```python
import torch

def _softmax(x, axis=-1):
    return torch.softmax(x, dim=axis)

def _gelu(x):
    return torch.nn.functional.gelu(x, approximate='tanh')

def _silu(x):
    return torch.nn.functional.silu(x)

def _sigmoid(x):
    return torch.sigmoid(x)

def _layernorm(x, axis=-1, eps=1e-05):
    m = x.mean(dim=axis, keepdim=True)
    v = x.var(dim=axis, keepdim=True, unbiased=False)
    return (x - m) / torch.sqrt(v + eps)

def _scatter_add(tgt, idx, src, axis=0):
    return tgt.clone().index_add_(axis, idx, src)

def _segment_sum(src, seg, n):
    out = torch.zeros((n,) + src.shape[1:], dtype=src.dtype)
    return out.index_add_(0, seg, src)

def _pad(x, pw):
    flat = tuple((v for pair in reversed(pw) for v in pair))
    return torch.nn.functional.pad(x, flat)
kernel_name = 'parallel_sum__linear_kernel_hedgehog__mixer_gmlp__prompt'

def setup_inputs():

    _w = lambda a: (lambda t: t.to(torch.bfloat16) if t.is_floating_point() else t)(torch.as_tensor(a))

    def _A_setup():
        B, S, D, H = (1, 2048, 576, 32)
        Dh = D // H
        return {'x': _w((lambda *s: torch.randn(*s, dtype=torch.bfloat16) * 0.05)(B, S, D)), 'wqkv': _w((lambda *s: torch.randn(*s, dtype=torch.bfloat16) * 0.4)(D, 3 * D)), 'w_phi': _w((lambda *s: torch.randn(*s, dtype=torch.bfloat16) * 0.4)(H, Dh, Dh) * Dh ** (-0.5)), 'wo': _w((lambda *s: torch.randn(*s, dtype=torch.bfloat16) * 0.4)(D, D))}
    _A_in = _A_setup()

    def _B_setup():
        B, S, D, F = (1, 2048, 576, 4608)
        Fh = F // 2
        return {'x': _w((lambda *s: torch.randn(*s, dtype=torch.bfloat16) * 0.05)(B, S, D)), 'w_in': _w((lambda *s: torch.randn(*s, dtype=torch.bfloat16) * 0.4)(D, 2 * Fh)), 'w_sp': _w(0.01 * (lambda *s: torch.randn(*s, dtype=torch.bfloat16) * 0.4)(S, S)), 'b_sp': _w(1.0 + 0.01 * (lambda *s: torch.randn(*s, dtype=torch.bfloat16) * 0.05)(S)), 'w_out': _w((lambda *s: torch.randn(*s, dtype=torch.bfloat16) * 0.05)(Fh, D))}
    _B_in = _B_setup()
    return {'A_x': _A_in['x'], 'A_wqkv': _A_in['wqkv'], 'A_w_phi': _A_in['w_phi'], 'A_wo': _A_in['wo'], 'B_x': _B_in['x'], 'B_w_in': _B_in['w_in'], 'B_w_sp': _B_in['w_sp'], 'B_b_sp': _B_in['b_sp'], 'B_w_out': _B_in['w_out']}

def reference(A_x, A_wqkv, A_w_phi, A_wo, B_x, B_w_in, B_w_sp, B_b_sp, B_w_out):

    def _A_ref(x, wqkv, w_phi, wo):
        B, S, D = x.shape
        H = 32
        Dh = D // H
        qkv = (lambda x, *d: x.permute(*d))((x @ wqkv).reshape(B, S, 3, H, Dh), 2, 0, 3, 1, 4)
        q, k, v = (qkv[0], qkv[1], qkv[2])
        pq = torch.einsum('bhsd,hdf->bhsf', q, w_phi)
        pk = torch.einsum('bhsd,hdf->bhsf', k, w_phi)
        phi_q = torch.concatenate([_softmax(pq, axis=-1), _softmax(-pq, axis=-1)], axis=-1)
        phi_k = torch.concatenate([_softmax(pk, axis=-1), _softmax(-pk, axis=-1)], axis=-1)
        kv = torch.einsum('bhsf,bhsd->bhfd', phi_k, v)
        z = torch.einsum('bhsf->bhf', phi_k)
        num = torch.einsum('bhqf,bhfd->bhqd', phi_q, kv)
        den = torch.einsum('bhqf,bhf->bhq', phi_q, z)[..., None] + 1e-06
        o = num / den
        return (lambda x, *d: x.permute(*d))(o, 0, 2, 1, 3).reshape(B, S, D) @ wo

    def _B_ref(x, w_in, w_sp, b_sp, w_out):
        B, S, D = x.shape
        F = w_in.shape[-1]
        Fh = F // 2
        z = _gelu(torch.einsum('bsd,df->bsf', x, w_in))
        z1 = z[..., :Fh].clone()
        z2 = _layernorm(z[..., Fh:], axis=-1)
        g = torch.einsum('ts,bsf->btf', w_sp, z2) + b_sp[None, :, None]
        return torch.einsum('bsf,fd->bsd', z1 * g, w_out)
    x = A_x
    xn = _layernorm(x, axis=-1)
    return x + _A_ref(xn, A_wqkv, A_w_phi, A_wo) + _B_ref(xn, B_w_in, B_w_sp, B_b_sp, B_w_out)
```

```python
import re

TRANS = ("v_exp_f32", "v_log_f32", "v_rcp_f32", "v_rsq_f32", "v_sqrt_f32", "v_sin_f32", "v_cos_f32", "v_rcp_iflag_f32")

def regs_of(tok):
    tok = tok.strip()
    neg = tok.lstrip("-")
    m = re.fullmatch(r"abs\((.*)\)", neg)
    if m: neg = m.group(1)
    neg = neg.strip("|")
    m = re.fullmatch(r"([vsa])(\d+)", neg)
    if m: return [(m.group(1), int(m.group(2)))]
    m = re.fullmatch(r"([vsa])\[(\d+):(\d+)\]", neg)
    if m: return [(m.group(1), i) for i in range(int(m.group(2)), int(m.group(3)) + 1)]
    if neg == "vcc": return [("s", "vcc")]
    if neg in ("exec", "exec_lo", "exec_hi"): return [("s", "exec")]
    if neg == "m0": return [("s", "m0")]
    return []

class Ins:
    __slots__ = ("text", "op", "kind", "wr", "rd", "dpp", "states", "srcC", "wide_store", "lds_dma")
    def __init__(self, text):
        self.text = text
        t = text.split(";")[0].strip()
        parts = t.split(None, 1)
        self.op = op = parts[0]
        rest = parts[1] if len(parts) > 1 else ""
        ops = [x.strip() for x in re.split(r",(?![^\[]*\])", rest)] if rest else []
        mods = ""
        if ops:
            l = ops[-1].split(None, 1)
            ops[-1] = l[0]
            mods = l[1] if len(l) > 1 else ""
        self.dpp = ("_dpp" in op) or ("quad_perm" in mods) or ("row_" in mods)
        self.states = 1
        self.srcC = []
        self.wide_store = False
        self.lds_dma = False
        R = [regs_of(x) for x in ops]
        flat = lambda L: [r for x in L for r in x]
        wr, rd = [], []
        if op == "s_nop":
            self.kind = "nop"; self.states = int(ops[0], 0) + 1
        elif op.startswith("v_mfma"):
            self.kind = "mfma"; wr = R[0]; rd = flat(R[1:]); self.srcC = R[3]
        elif op.startswith("v_cmp"):
            self.kind = "valu"; wr = R[0]; rd = flat(R[1:])
            if op.startswith("v_cmpx"): wr = wr + [("s", "exec")]
        elif op.startswith("v_readfirstlane") or op.startswith("v_readlane"):
            self.kind = "valu"; wr = R[0]; rd = flat(R[1:])
        elif op.startswith("v_permlane") and "swap" in op:
            self.kind = "valu"; wr = flat(R); rd = flat(R)
        elif op.startswith("v_"):
            self.kind = "trans" if any(op.startswith(x) for x in TRANS) else "valu"
            if op.startswith("v_dot"): self.kind = "dot"
            wr = list(R[0]); rd = flat(R[1:])
            if re.match(r"v_(add|sub|subrev|addc|subb|subbrev)_co_", op) or op.startswith("v_mad_u64") or op.startswith("v_div_scale"):
                wr += R[1]; rd = flat(R[2:])
            if op.startswith(("v_fmac", "v_dot2c", "v_mac", "v_pk_fmac", "v_writelane")) or self.dpp or "d16_hi" in op or "sdwa" in op:
                rd += R[0]
            if op.startswith("v_cndmask") and len(ops) == 3: rd.append(("s", "vcc"))
        elif op.startswith("ds_"):
            self.kind = "ds"
            if op.startswith(("ds_read", "ds_bpermute", "ds_permute", "ds_swizzle")): wr = R[0]; rd = flat(R[1:])
            else: rd = flat(R)
        elif op.startswith(("buffer_", "global_", "flat_")):
            self.kind = "vmem"
            allmods = mods.split()
            if "lds" in allmods or "load_lds" in op:
                self.lds_dma = True; rd = flat(R) + [("s", "m0")]
            elif "_load" in op:
                wr = R[0]; rd = flat(R[1:])
            elif "atomic" in op and ("sc0" in allmods):
                if op.startswith("buffer"): wr = R[0]; rd = flat(R)
                else: wr = R[0]; rd = flat(R[1:])
            else:
                rd = flat(R)
                if re.search(r"x[34]$", op): self.wide_store = True
        elif op.startswith("s_"):
            self.kind = "salu"
            if op.startswith(("s_cmp", "s_cbranch", "s_branch", "s_waitcnt", "s_barrier", "s_sleep", "s_setprio", "s_endpgm")):
                rd = flat(R)
            else:
                wr = R[0] if R else []; rd = flat(R[1:])
                if "saveexec" in op: wr = wr + [("s", "exec")]
            if op.startswith(("s_load", "s_memtime", "s_memrealtime", "s_buffer_load")): self.kind = "smem"
        else:
            raise ValueError("unknown instr: " + text)
        self.wr = set(wr); self.rd = set(rd)

def store_data_regs(ins):
    t = ins.text.split(";")[0].strip().split(None, 1)[1]
    ops = [x.strip() for x in re.split(r",(?![^\[]*\])", t)]
    if ins.op.startswith("buffer"): return set(regs_of(ops[0]))
    return set(regs_of(ops[1]))

def need(prod, cons):
    n = 0
    pv = {r for r in prod.wr if r[0] in "va"}
    ps = {r for r in prod.wr if r[0] == "s"}
    isvalu = lambda i: i.kind in ("valu", "trans", "dot")
    if isvalu(prod):
        if cons.kind == "mfma" and (pv & cons.rd): n = max(n, 2)
        if isvalu(cons) and cons.dpp and (pv & cons.rd): n = max(n, 2)
        if cons.op.startswith("v_permlane") and (pv & cons.rd): n = max(n, 2)
        if cons.op.startswith(("v_readfirstlane", "v_readlane")) and (pv & cons.rd): n = max(n, 1)
        if cons.kind == "vmem" and (ps & cons.rd): n = max(n, 5)
        if isvalu(cons) and (ps & cons.rd): n = max(n, 2)
        if cons.op.startswith(("v_readlane", "v_writelane")) and (ps & cons.rd): n = max(n, 4)
        if ("s", "exec") in ps:
            if cons.kind == "mfma": n = max(n, 4)
            if isvalu(cons) and cons.dpp: n = max(n, 5)
            if cons.op.startswith(("v_readfirstlane", "v_readlane", "v_writelane", "v_permlane")): n = max(n, 4)
        if cons.kind == "salu" and (ps & cons.rd): n = max(n, 1)
        if prod.kind == "trans" and isvalu(cons) and cons.kind != "trans" and (pv & cons.rd): n = max(n, 1)
        if prod.kind == "trans" and cons.kind == "trans" and (pv & cons.rd): n = max(n, 1)
        if prod.kind == "dot" and not (cons.op == prod.op and not (pv & (cons.rd - cons.wr))):
            if (pv & (cons.rd | cons.wr)): n = max(n, 3)
    if prod.kind == "mfma":
        passes = 8 if "32x32" in prod.op else 4
        D = prod.wr
        if cons.kind == "mfma":
            cC = set(cons.srcC)
            ab = cons.rd - cC
            if D & ab: n = max(n, passes + 4)
            if D & cC and not (cC == D): n = max(n, passes + 2)
            if (D & cons.wr) and not (D & cC): n = max(n, passes + 2)
        else:
            if D & (cons.rd | cons.wr): n = max(n, passes + 4)
            if isvalu(cons) and (set(prod.srcC) & cons.wr): n = max(n, passes - 1)
    if prod.kind == "vmem" and prod.wide_store:
        if (store_data_regs(prod) & cons.wr): n = max(n, 2)
    if prod.kind == "salu" and ("s", "m0") in prod.wr and cons.lds_dma: n = max(n, 1)
    return n

class Stream:
    def __init__(self, name):
        self.name = name
        self.items = []
        self.vm = []
        self.lg = []
        self.uid = 0
        self.nbar = 0
    def __call__(self, text, tag=None):
        for line in text.split("\n"):
            line = line.strip()
            if not line: continue
            ins = Ins(line)
            self.items.append(ins)
            if ins.kind == "vmem": self.vm.append(tag)
            elif ins.kind == "ds": self.lg.append(tag)
            elif ins.kind == "smem": self.lg.append("SMEM")
            elif ins.op == "s_barrier": self.nbar += 1
            elif ins.op == "s_waitcnt":
                m = re.search(r"vmcnt\((\d+)\)", line)
                if m:
                    n = int(m.group(1)); self.vm = self.vm[len(self.vm) - n:] if n < len(self.vm) else self.vm
                    if n == 0: self.vm = []
                m = re.search(r"lgkmcnt\((\d+)\)", line)
                if m:
                    n = int(m.group(1))
                    if n == 0: self.lg = []
                    else:
                        assert "SMEM" not in self.lg, "counted lgkm wait with SMEM outstanding"
                        self.lg = self.lg[len(self.lg) - n:] if n < len(self.lg) else self.lg
    def label(self, n): self.items.append(("label", n))
    def comment(self, t): self.items.append(("raw", "; " + t))
    def newlabel(self, p="L"):
        self.uid += 1
        return f"{p}_{self.name}_{self.uid}"
    def _wait(self, q, tag, cnt, maxn):
        idx = [i for i, t in enumerate(q) if t == tag]
        if not idx: return
        n = len(q) - 1 - idx[-1]
        n = min(n, maxn)
        self(f"s_waitcnt {cnt}({n})")
    def wait_vm(self, tag): self._wait(self.vm, tag, "vmcnt", 63)
    def wait_lg(self, tag): self._wait(self.lg, tag, "lgkmcnt", 15)
    def barrier(self): self("s_barrier")

def finalize(items, window=24):
    out = []
    hist = []
    npad = 0
    for it in items:
        if isinstance(it, tuple):
            out.append(it[1] + ":" if it[0] == "label" else "    " + it[1])
            continue
        dist = 0; req = 0
        for p in reversed(hist[-window:]):
            nd = need(p, it)
            if nd > dist: req = max(req, nd - dist)
            dist += p.states
            if dist >= 20: break
        if req > 0:
            nop = Ins(f"s_nop {req-1}")
            out.append("    " + nop.text); hist.append(nop); npad += 1
        out.append("    " + it.text); hist.append(it)
    return "\n".join(out) + "\n", npad

def check_loop(items, label):
    idx = [i for i, it in enumerate(items) if isinstance(it, tuple) and it[0] == "label" and it[1] == label][0]
    end = [i for i, it in enumerate(items) if not isinstance(it, tuple) and it.op.startswith(("s_cbranch", "s_branch")) and it.text.split()[-1] == label][-1]
    body = [it for it in items[idx:end + 1] if not isinstance(it, tuple)]
    tail = body[-24:]
    for k, it in enumerate(body[:24]):
        dist = 0
        seq = tail + body[:k]
        for p in reversed(seq):
            nd = need(p, it)
            if nd > dist: raise RuntimeError(f"loop hazard at {label}: {p.text} -> {it.text} need {nd} have {dist}")
            dist += p.states
            if dist >= 20: break

def V(i, n=1): return f"v{i}" if n == 1 else f"v[{i}:{i+n-1}]"
def S(i, n=1): return f"s{i}" if n == 1 else f"s[{i}:{i+n-1}]"
```

```python
import sys, struct, math
from asmlib import *
NAME = "parallel_sum__linear_kernel_hedgehog__mixer_gmlp__prompt"

def f2u(x): return struct.unpack("<I", struct.pack("<f", x))[0]
LOG2E = 1.4426950408889634
C1 = -2.0 * math.sqrt(2.0 / math.pi) * LOG2E
C2 = C1 * 0.044715

WS_Z2 = 0
WS_Y = 0xA00000
WS_ST = 0x1600000
WS_KV = 0x1680000
WS_CNT = 0x1700000
WS_TS = 0x1800000
CNT_ST, CNT_Z2, CNT_O, CNT_Y, CNT_KV = 0, 1, 2, 3, 4
P1_SLOT = 18432; P1_R = 5
L_HO = 92160; L_VI = L_HO + 20480; L_PI = 129024
L_IMG = 153600; L_SCR = L_IMG + 5760; L_OOB = L_SCR + 1024
L_XB = 73728
P2_SLOT = 34816
P3_SLOT = 17408; P3_R = 8
L_Z1 = 0; L_EX = 36864
sX, sWQKV, sWPHI, sWO, sWIN, sWSP, sBSP, sWOUT, sOUT, sDBG, sWS = 4, 6, 8, 10, 14, 16, 18, 20, 22, 24, 26
rX, rW, rWS, rWSP, rWO, rOUT, rM = 28, 32, 36, 40, 44, 48, 52
sRB, sCG, sW, sWI = 60, 61, 62, 63
sC2, sLOG, sONE, sMSK = 80, 81, 82, 83
sEX = 84

class Cfg:
    stop = 99
    stamps = False
    dump_z1 = False

def srd(o, r, ptr, off_s, nbytes_expr):
    if off_s is None:
        o(f"s_mov_b32 s{r}, s{ptr}"); o(f"s_mov_b32 s{r+1}, s{ptr+1}")
    else:
        o(f"s_add_u32 s{r}, s{ptr}, s{off_s}"); o(f"s_addc_u32 s{r+1}, s{ptr+1}, 0")
    o(f"s_mov_b32 s{r+2}, {nbytes_expr}")
    o(f"s_mov_b32 s{r+3}, 0x20000")

def stamp(o, cfg, idx):
    if not cfg.stamps: return
    o("s_memrealtime s[92:93]")
    o("s_waitcnt lgkmcnt(0)")
    o(f"s_mov_b64 s[94:95], exec")
    o("s_mov_b64 exec, 1")
    o("v_mov_b32 v14, s92")
    o(f"buffer_store_dword v14, v15, s[{rWS}:{rWS+3}], 0 offen offset:{idx*4}", tag="stamp")
    o("s_mov_b64 exec, s[94:95]")

def poll(o, vaddr, vtmp, nlanes, target, srdr, soff="0"):
    L = o.newlabel("Lp"); E = o.newlabel("Lpe")
    o(f"s_mov_b64 s[{sEX}:{sEX+1}], exec")
    o(f"s_mov_b64 exec, {(1 << nlanes) - 1}")
    o("s_mov_b32 s64, 0x8000")
    o.label(L)
    o(f"buffer_load_dword v{vtmp}, v{vaddr}, s[{srdr}:{srdr+3}], {soff} offen sc1")
    o("s_waitcnt vmcnt(0)")
    o(f"v_cmp_ne_u32 vcc, {target}, v{vtmp}")
    o("s_sub_u32 s64, s64, 1")
    o("s_cmp_eq_u32 s64, 0")
    o(f"s_cbranch_scc1 {E}")
    o(f"s_cbranch_vccnz {L}")
    o.label(E)
    o(f"s_mov_b64 exec, s[{sEX}:{sEX+1}]")

def signal(o, kind, idx_s, v0, v1):
    o(f"s_lshl_b32 s64, s{idx_s}, 12")
    o(f"s_add_u32 s64, s64, {WS_CNT + kind*16*4096}")
    o(f"s_mov_b64 s[{sEX}:{sEX+1}], exec")
    o("s_mov_b64 exec, 1")
    o(f"v_mov_b32 v{v0}, 0"); o(f"v_mov_b32 v{v1}, 1")
    o(f"buffer_atomic_add v{v1}, v{v0}, s[{rWS}:{rWS+3}], s64 offen sc1", tag="sig")
    o(f"s_mov_b64 exec, s[{sEX}:{sEX+1}]")

def prologue(o, cfg):
    o("s_cmp_ge_u32 s2, 256")
    o("s_cbranch_scc1 L_end")
    o("s_load_dwordx8 s[4:11], s[0:1], 0")
    o("s_load_dwordx8 s[12:19], s[0:1], 32")
    o("s_load_dwordx8 s[20:27], s[0:1], 64")
    o("s_and_b32 s64, s2, 7"); o("s_lshr_b32 s65, s2, 3")
    o("s_lshr_b32 s66, s64, 1"); o("s_lshl_b32 s66, s66, 2"); o("s_lshr_b32 s67, s65, 3"); o(f"s_add_u32 s{sRB}, s66, s67")
    o("s_and_b32 s66, s64, 1"); o("s_lshl_b32 s66, s66, 3"); o("s_and_b32 s67, s65, 7"); o(f"s_add_u32 s{sCG}, s66, s67")
    o("v_lshrrev_b32 v2, 6, v0")
    o("v_and_b32 v1, 63, v0")
    o(f"v_readfirstlane_b32 s{sW}, v2")
    o(f"s_mov_b32 s{sC2}, {f2u(C2):#x}"); o(f"s_mov_b32 s{sLOG}, {f2u(LOG2E):#x}")
    o(f"s_mov_b32 s{sONE}, 0x3f803f80"); o(f"s_mov_b32 s{sMSK}, 0xffff0000")
    o(f"s_and_b32 s{sWI}, s{sW}, 3")
    o("v_lshrrev_b32 v2, 2, v1")
    o("v_and_b32 v3, 3, v1")
    o("v_lshrrev_b32 v4, 2, v2"); o("v_and_b32 v5, 3, v2")
    o("v_lshl_add_u32 v4, v4, 3, v5")
    o(f"s_lshl_b32 s64, s{sWI}, 5"); o(f"s_lshr_b32 s65, s{sW}, 2"); o("s_lshl_b32 s65, s65, 2"); o("s_add_u32 s64, s64, s65")
    o("v_add_u32 v4, s64, v4")
    o("v_mul_u32_u24 v4, 1152, v4")
    o("v_lshl_add_u32 v4, v3, 4, v4")
    o("v_lshlrev_b32 v5, 1, v3"); o("v_xor_b32 v5, v5, v2"); o("v_lshlrev_b32 v5, 4, v5")
    o("v_lshl_add_u32 v5, v3, 8, v5")
    o(f"s_mul_i32 s64, s{sW}, 9216"); o(f"s_add_u32 s64, s64, {L_XB}")
    o("v_add_u32 v5, s64, v5")
    o("s_waitcnt lgkmcnt(0)")
    o(f"s_mul_i32 s64, s{sRB}, 147456")
    srd(o, rX, sX, 64, 147456)
    srd(o, rWS, sWS, None, 0x10000000)
    if cfg.stamps:
        o(f"s_lshl_b32 s64, s2, 3"); o(f"s_add_u32 s64, s64, s{sW}"); o("s_lshl_b32 s64, s64, 7"); o(f"s_add_u32 s64, s64, {WS_TS}")
        o("v_mov_b32 v15, s64")
    stamp(o, cfg, 0)
    for i in range(18):
        o(f"buffer_load_dwordx4 {V(XR + 4*i, 4)}, v4, s[{rX}:{rX+3}], 0 offen offset:{i*64}", tag=("x", i))

XR = 40

def layernorm_x(o):
    for k in range(4): o(f"v_mov_b32 v{112+k}, 0"); o(f"v_mov_b32 v{116+k}, 0")
    for i in range(18):
        o.wait_vm(("x", i))
        for k in range(4):
            o(f"v_dot2c_f32_bf16 v{112+k}, s{sONE}, v{XR+4*i+k}")
        for k in range(4):
            o(f"v_dot2c_f32_bf16 v{116+k}, v{XR+4*i+k}, v{XR+4*i+k}")
    o("v_add_f32 v112, v112, v113"); o("v_add_f32 v114, v114, v115"); o("v_add_f32 v116, v116, v117"); o("v_add_f32 v118, v118, v119")
    o("v_add_f32 v112, v112, v114"); o("v_add_f32 v116, v116, v118")
    for qp in ("[1,0,3,2]", "[2,3,0,1]"):
        o(f"v_add_f32_dpp v112, v112, v112 quad_perm:{qp} row_mask:0xf bank_mask:0xf")
        o(f"v_add_f32_dpp v116, v116, v116 quad_perm:{qp} row_mask:0xf bank_mask:0xf")
    inv = f2u(1.0 / 576.0)
    o(f"v_mul_f32 v112, {inv:#x}, v112")
    o(f"v_mul_f32 v116, {inv:#x}, v116")
    o("v_fma_f32 v116, -v112, v112, v116")
    o("v_max_f32 v116, 0, v116")
    o(f"v_add_f32 v116, {f2u(1e-5):#x}, v116")
    o("v_rsq_f32 v116, v116")
    o("v_mul_f32 v112, v112, v116")
    o("v_sub_f32 v112, 0, v112")
    for i in range(0, 72, 4):
        for k in range(4):
            o(f"v_lshlrev_b32 v{6+2*k}, 16, v{XR+i+k}")
            o(f"v_and_b32 v{7+2*k}, s{sMSK}, v{XR+i+k}")
        for k in range(8): o(f"v_fma_f32 v{6+k}, v{6+k}, v116, v112")
        for k in range(4): o(f"v_cvt_pk_bf16_f32 v{XR+i+k}, v{6+2*k}, v{7+2*k}")

def ln_write(o, rnd):
    for i in range(9):
        o(f"ds_write_b128 v5, {V(XR + 4*(9*rnd+i), 4)} offset:{i*1024}")
    o("s_waitcnt lgkmcnt(0)")

XN = 112; ACC = 40; WF = 16; NWF = 6; DPF = 5

def roleA(o, cfg):
    layernorm_x(o)
    o("v_and_b32 v2, 15, v1"); o("v_lshrrev_b32 v3, 4, v1")
    o("v_lshlrev_b32 v6, 1, v3"); o("v_xor_b32 v6, v6, v2"); o("v_lshlrev_b32 v6, 4, v6")
    o("v_lshl_add_u32 v6, v3, 8, v6")
    o(f"s_mul_i32 s64, s{sWI}, 9216"); o(f"s_add_u32 s64, s64, {L_XB}")
    o("v_add_u32 v6, s64, v6")
    for rnd in range(2):
        ln_write(o, rnd)
        o.barrier()
        for i in range(9):
            for h in range(2):
                ks = 9*rnd + i
                o(f"ds_read_b128 {V(XN + (ks*2+h)*4, 4)}, v6 offset:{h*36864 + i*1024}")
        o("s_waitcnt lgkmcnt(0)")
        if rnd == 0: o.barrier()
    o("v_lshrrev_b32 v4, 2, v2"); o("v_and_b32 v5, 3, v2")
    o("v_lshl_add_u32 v4, v3, 2, v4")
    o("v_mul_u32_u24 v4, 288, v4")
    o("v_lshl_add_u32 v7, v5, 3, v4")
    o("v_add_u32 v8, 55296, v7")
    o("v_mul_u32_u24 v9, 48, v5"); o("v_lshrrev_b32 v10, 1, v5"); o("v_lshl_add_u32 v9, v10, 3, v9")
    o("v_add_u32 v9, v9, v4"); o("v_add_u32 v10, 55296, v9")
    o("v_and_b32 v11, 1, v5"); o("v_mul_u32_u24 v11, 48, v11"); o("v_add_u32 v11, v11, v4"); o("v_add_u32 v11, 224, v11")
    o("v_add_u32 v12, 55296, v11")
    o("v_lshlrev_b32 v13, 4, v1")
    o(f"s_mul_i32 s64, s{sWI}, 9216"); o(f"s_add_u32 s64, s64, {L_HO}")
    o(f"s_mul_i32 s65, s{sWI}, 5120"); o(f"s_add_u32 s65, s65, {L_HO}")
    o("v_add_u32 v14, s65, v13")
    o("v_lshlrev_b32 v4, 3, v1"); o("v_add_u32 v4, s65, v4")
    o("v_add_u32 v13, s64, v13")
    o(f"s_lshl_b32 s64, s{sWI}, 5"); o("v_add_u32 v5, s64, v2"); o("v_mul_u32_u24 v5, 96, v5")
    o(f"v_add_u32 v5, {L_VI}, v5")
    o("v_mov_b32 v6, 32")
    o("v_mov_b32 v2, 80"); o("v_cmp_eq_u32 vcc, 1, v3"); o("v_cndmask_b32 v6, v6, v2, vcc")
    o("v_mov_b32 v2, 88"); o("v_cmp_eq_u32 vcc, 2, v3"); o("v_cndmask_b32 v6, v6, v2, vcc")
    o("v_mov_b32 v2, 40"); o("v_cmp_eq_u32 vcc, 3, v3"); o("v_cndmask_b32 v6, v6, v2, vcc")
    o("v_add_u32 v6, v6, v5")
    o("v_lshl_add_u32 v5, v3, 3, v5")
    o("v_mov_b32 v3, v14")
    stamp(o, cfg, 1)

    blocks = [("z2", 9), ("qkv", 8), ("z1", 9)]
    frags = []
    for b, (bn, nt) in enumerate(blocks):
        for sl in range(9):
            for k2 in range(2):
                for f in range(nt):
                    frags.append((b, b*9 + sl, sl*2 + k2, f))
    def rd_addr(b, slot, ks, f, hh):
        pos = slot % P1_R
        off = pos * P1_SLOT + ((ks & 1)*32 + 16*hh) * 288
        bn = blocks[b][0]
        if bn == "qkv":
            if f < 5: base = (9, 10); off += 8*f
            elif f < 7: base = (7, 8); off += 192 + 48*(f-5)
            else: base = (11, 12)
        else:
            base = (7, 8); off += 32*f
        if off >= 55296: return base[1], off - 55296
        return base[0], off
    def issue_reads(e):
        b, slot, ks, f = frags[e]
        if e == 0 or frags[e-1][1] != slot:
            o.wait_lg("ho")
            o.barrier()
        buf = WF + 4*(e % NWF)
        for hh in range(2):
            a, off = rd_addr(b, slot, ks, f, hh)
            o(f"ds_read_b64_tr_b16 {V(buf+2*hh, 2)}, v{a} offset:{off}", tag=("w", e))

    def handoff(b, f):
        bn = blocks[b][0]
        a0, a1 = ACC + (f*2)*4, ACC + (f*2+1)*4
        if bn in ("z2", "z1"):
            o(f"v_cvt_pk_bf16_f32 v{a0}, v{a0}, v{a0+1}"); o(f"v_cvt_pk_bf16_f32 v{a0+1}, v{a0+2}, v{a0+3}")
            o(f"v_cvt_pk_bf16_f32 v{a0+2}, v{a1}, v{a1+1}"); o(f"v_cvt_pk_bf16_f32 v{a0+3}, v{a1+2}, v{a1+3}")
            o(f"ds_write_b128 v13, {V(a0,4)} offset:{f*1024}", tag="ho")
        else:
            for h, a in ((0, a0), (1, a1)):
                o(f"v_cvt_pk_bf16_f32 v{a}, v{a}, v{a+1}")
                if f == 7: o(f"v_mov_b32 v{a+1}, 0x3f80")
                else: o(f"v_cvt_pk_bf16_f32 v{a+1}, v{a+2}, v{a+3}")
            for h, a in ((0, a0), (1, a1)):
                d = V(a, 2)
                if f < 4:
                    o(f"ds_write_b64 v3, {d} offset:{h*2560 + (f>>1)*1024 + 8*(f&1)}", tag="ho")
                elif f == 4: o(f"ds_write_b64 v4, {d} offset:{h*2560 + 2048}", tag="ho")
                elif f < 7: o(f"ds_write_b64 v5, {d} offset:{h*16*96 + 48*(f-5)}", tag="ho")
                else: o(f"ds_write_b64 v6, {d} offset:{h*16*96}", tag="ho")
    for e in range(DPF): issue_reads(e)
    n = len(frags)
    for e in range(n):
        b, slot, ks, f = frags[e]
        if e + DPF < n: issue_reads(e + DPF)
        if ks == 0 and b > 0:
            pn = blocks[b-1][1]
            if f < pn: handoff(b-1, f)
            if f == blocks[b][1]-1 and pn > blocks[b][1]: handoff(b-1, pn-1)
        o.wait_lg(("w", e))
        buf = WF + 4*(e % NWF)
        for h in range(2):
            acc = V(ACC + (f*2+h)*4, 4)
            xn = V(XN + (ks*2+h)*4, 4)
            c = "0" if ks == 0 else acc
            if blocks[b][0] == "z2": o(f"v_mfma_f32_16x16x32_bf16 {acc}, {xn}, {V(buf,4)}, {c}")
            else: o(f"v_mfma_f32_16x16x32_bf16 {acc}, {V(buf,4)}, {xn}, {c}")
    for f in range(9): handoff(2, f)
    o("s_waitcnt lgkmcnt(0)")
    stamp(o, cfg, 2)
    o.barrier()
    if cfg.stop <= 1: return
    roleA_p2(o, cfg)
    if cfg.stop <= 2: return
    roleA_p3(o, cfg)

A2 = 112; FF = 40; TF = 76

def roleA_p2(o, cfg):
    o("v_and_b32 v2, 15, v1"); o("v_lshrrev_b32 v3, 4, v1")
    o(f"s_and_b32 s64, s{sWI}, 1"); o(f"s_lshr_b32 s65, s{sWI}, 1")
    o("s_lshl_b32 s66, s64, 2")
    o("v_add_u32 v4, s66, v3"); o("v_and_b32 v5, 7, v2"); o("v_xor_b32 v4, v4, v5"); o("v_lshlrev_b32 v4, 4, v4")
    o("v_lshl_add_u32 v4, v2, 7, v4")
    o("s_lshl_b32 s66, s65, 13")
    o("v_add_u32 v4, s66, v4")
    o(f"v_add_u32 v5, {2*P2_SLOT}, v4")
    o("s_mul_i32 s66, s64, 9216"); o("s_add_u32 s66, s66, 16384")
    o("v_lshlrev_b32 v6, 4, v1"); o("v_add_u32 v6, s66, v6")
    o(f"v_add_u32 v7, {2*P2_SLOT}, v6")
    o("v_lshrrev_b32 v8, 2, v2"); o("v_and_b32 v9, 3, v2"); o("v_lshl_add_u32 v8, v8, 3, v9")
    o(f"s_lshl_b32 s66, s{sRB}, 7"); o(f"s_lshl_b32 s67, s{sWI}, 5"); o("s_add_u32 s66, s66, s67")
    o("v_add_u32 v8, s66, v8"); o("v_lshlrev_b32 v8, 1, v8")
    srd(o, rM, sBSP, None, 4096)
    o(f"buffer_load_ushort v10, v8, s[{rM}:{rM+3}], 0 offen", tag="bsp")
    o(f"buffer_load_ushort v11, v8, s[{rM}:{rM+3}], 0 offen offset:8", tag="bsp")
    for i in range(144): o(f"v_mov_b32 v{A2+i}, 0")
    def rdT(stage, t):
        pos = stage % 4
        a = 4 if pos < 2 else 5
        o(f"ds_read_b128 {V(TF + (stage&1)*16 + 4*t, 4)}, v{a} offset:{(pos&1)*P2_SLOT + t*2048}", tag=("T", stage & 3, t))
    def rdF(stage, f):
        pos = stage % 4
        a = 6 if pos < 2 else 7
        o(f"ds_read_b128 {V(FF + 4*f, 4)}, v{a} offset:{(pos&1)*P2_SLOT + f*1024}", tag=("F", stage & 3, f))
    o.barrier()
    o.barrier()
    stamp(o, cfg, 3)
    for t in range(4): rdT(0, t)
    for f in range(9): rdF(0, f)
    def body(s):
        o.barrier()
        for f in range(9):
            o.wait_lg(("F", s & 3, f))
            if f == 0: o.wait_lg(("T", s & 3, 3))
            for t in range(4):
                acc = V(A2 + (f*4+t)*4, 4)
                o(f"v_mfma_f32_16x16x32_bf16 {acc}, {V(FF+4*f,4)}, {V(TF + (s&1)*16 + 4*t, 4)}, {acc}")
                if f == 1: rdT(s+1, t)
            rdF(s+1, f)
    for s in range(4): body(s)
    o("s_mov_b32 s68, 7")
    L = o.newlabel("LP2")
    o.label(L)
    snap = list(o.lg)
    for s in range(4, 8): body(s)
    assert o.lg == snap, (o.lg, snap)
    o("s_sub_u32 s68, s68, 1"); o("s_cmp_lg_u32 s68, 0"); o(f"s_cbranch_scc1 {L}")
    o.loops.append(L)
    o.nbar += 6*4
    stamp(o, cfg, 4)
    o("s_waitcnt lgkmcnt(0)")
    o("v_lshlrev_b32 v4, 4, v1")
    o(f"s_mul_i32 s66, s{sWI}, 18432"); o(f"s_add_u32 s66, s66, {L_EX}")
    o(f"s_xor_b32 s67, s{sWI}, 1"); o("s_mul_i32 s67, s67, 18432"); o(f"s_add_u32 s67, s67, {L_EX}")
    o(f"s_mul_i32 s69, s{sWI}, 9216"); o(f"s_add_u32 s69, s69, {L_Z1}")
    o("v_add_u32 v5, s66, v4"); o("v_add_u32 v6, s67, v4"); o("v_add_u32 v7, s69, v4")
    o(f"s_lshl_b32 s66, s{sRB}, 1"); o("s_add_u32 s66, s66, s65"); o(f"s_mul_i32 s66, s66, {90*4096}")
    o(f"s_add_u32 s66, s66, {WS_Y}"); o("s_lshl_b32 s67, s64, 11"); o("s_add_u32 s66, s66, s67")
    o(f"s_lshl_b32 s67, s{sCG}, 14"); o("s_add_u32 s70, s66, s67"); o(f"s_add_u32 s70, s70, {18*4096}")
    o(f"s_lshr_b32 s67, s{sCG}, 1"); o("s_lshl_b32 s67, s67, 12"); o("s_add_u32 s71, s66, s67"); o(f"s_add_u32 s71, s71, {82*4096}")
    o(f"s_and_b32 s67, s{sCG}, 1"); o("s_lshl_b32 s67, s67, 3"); o("s_add_u32 s71, s71, s67")
    LK = o.newlabel("Lkh1"); LJ = o.newlabel("Lkhj")
    sv = (list(o.vm), list(o.lg), o.nbar)
    for kh in range(2):
        o.vm, o.lg, o.nbar = list(sv[0]), list(sv[1]), sv[2]
        if kh == 0:
            o("s_cmp_lg_u32 s64, 0"); o(f"s_cbranch_scc1 {LK}")
        else:
            o.label(LK)
            o("s_nop 7")
        keep = (2*kh, 2*kh+1); send = (2-2*kh, 3-2*kh)
        for f in range(9):
            for h in range(2):
                o(f"ds_write_b128 v5, {V(A2 + (f*4+send[h])*4, 4)} offset:{(f*2+h)*1024}")
        o("s_waitcnt lgkmcnt(0)")
        o.barrier()
        for f in range(9):
            o(f"ds_read_b128 {V(FF+4*f,4)}, v7 offset:{f*1024}", tag=("z1", f))
            for h in range(2):
                o(f"ds_read_b128 {V(A2 + (f*4+send[h])*4, 4)}, v6 offset:{(f*2+h)*1024}", tag=("ex", f, h))
            if f >= 3: y_tile(o, f-3, keep, send)
        for f in range(6, 9): y_tile(o, f, keep, send)
        if kh == 0: o(f"s_branch {LJ}")
    o.label(LJ)
    o.barrier()
    o("s_waitcnt vmcnt(0)")
    signal(o, CNT_Y, sRB, 8, 9)
    stamp(o, cfg, 5)

def y_tile(o, f, keep, send):
    if f == 0:
        o.wait_vm("bsp")
        o("v_lshlrev_b32 v10, 16, v10"); o("v_lshlrev_b32 v11, 16, v11")
    o.wait_lg(("ex", f, 1))
    YP = 76
    for h in range(2):
        k = A2 + (f*4+keep[h])*4; r = A2 + (f*4+send[h])*4
        z = FF + 4*f + 2*h
        for i in range(4): o(f"v_add_f32 v{k+i}, v{k+i}, v{r+i}")
        o(f"v_lshlrev_b32 v{r}, 16, v{z}"); o(f"v_and_b32 v{r+1}, s{sMSK}, v{z}")
        o(f"v_lshlrev_b32 v{r+2}, 16, v{z+1}"); o(f"v_and_b32 v{r+3}, s{sMSK}, v{z+1}")
        for i in range(4): o(f"v_add_f32 v{k+i}, v{k+i}, v{10+h}")
        for i in range(4): o(f"v_mul_f32 v{k+i}, v{k+i}, v{r+i}")
        yp = YP + ((f>>1)&1)*8 + h*4 + (f&1)*2
        o(f"v_cvt_pk_bf16_f32 v{yp}, v{k}, v{k+1}"); o(f"v_cvt_pk_bf16_f32 v{yp+1}, v{k+2}, v{k+3}")
    for h in range(2):
        yp = YP + ((f>>1)&1)*8 + h*4
        if f == 8:
            o(f"buffer_store_dwordx2 {V(yp,2)}, v4, s[{rWS}:{rWS+3}], s71 offen offset:{h*1024} sc1")
        elif f & 1:
            if h == 0 and f > 1: o("s_add_u32 s70, s70, 4096")
            o(f"buffer_store_dwordx4 {V(yp,4)}, v4, s[{rWS}:{rWS+3}], s70 offen offset:{h*1024} sc1")

A3 = 112; F3 = 40

def roleA_p3(o, cfg):
    o("v_and_b32 v2, 15, v1"); o("v_lshrrev_b32 v3, 4, v1")
    o(f"s_and_b32 s64, s{sWI}, 1"); o(f"s_lshr_b32 s65, s{sWI}, 1")
    o("s_lshl_b32 s66, s64, 12"); o("s_lshl_b32 s67, s65, 11"); o("s_add_u32 s66, s66, s67")
    o("v_lshlrev_b32 v4, 4, v1"); o("v_add_u32 v4, s66, v4")
    o("v_lshrrev_b32 v5, 2, v2"); o("v_lshl_add_u32 v5, v3, 2, v5"); o("s_lshl_b32 s66, s64, 5"); o("v_add_u32 v5, s66, v5")
    o("v_mul_u32_u24 v5, 144, v5"); o("v_and_b32 v6, 3, v2"); o("v_lshl_add_u32 v5, v6, 3, v5"); o("v_add_u32 v5, 8192, v5")
    o(f"v_add_u32 v6, {3*P3_SLOT}, v4"); o(f"v_add_u32 v7, {6*P3_SLOT}, v4")
    o(f"v_add_u32 v8, {3*P3_SLOT}, v5"); o(f"v_add_u32 v9, {6*P3_SLOT}, v5")
    o("v_lshrrev_b32 v10, 2, v2"); o("v_and_b32 v11, 3, v2"); o("v_lshl_add_u32 v10, v10, 3, v11")
    o(f"s_and_b32 s66, s{sCG}, 1"); o("s_lshl_b32 s66, s66, 6"); o("s_lshl_b32 s67, s65, 5"); o("s_add_u32 s66, s66, s67")
    o("s_lshl_b32 s67, s64, 2"); o("s_add_u32 s66, s66, s67")
    o("v_add_u32 v10, s66, v10"); o("v_mul_u32_u24 v10, 1152, v10")
    o(f"s_lshr_b32 s66, s{sCG}, 1"); o("s_mul_i32 s66, s66, 144")
    o("v_lshl_add_u32 v10, v3, 3, v10"); o("v_add_u32 v10, s66, v10")
    o(f"s_mul_i32 s66, s{sRB}, 147456")
    srd(o, rOUT, sOUT, 66, 147456)
    XO = 96
    for n in range(5):
        o(f"buffer_load_dwordx2 {V(XO+2*n,2)}, v10, s[{rX}:{rX+3}], 0 offen offset:{n*32}", tag="xres")
    for i in range(40): o(f"v_mov_b32 v{A3+i}, 0")
    def reads(s):
        pos = s % P3_R
        ya = (4, 6, 7)[pos // 3]; wa = (5, 8, 9)[pos // 3]; off = (pos % 3) * P3_SLOT
        b = F3 + (s & 1) * 28
        for tt in range(2):
            o(f"ds_read_b128 {V(b+4*tt,4)}, v{ya} offset:{off + tt*1024}", tag=("p3", s & 7))
        for n in range(5):
            for hh in range(2):
                o(f"ds_read_b64_tr_b16 {V(b+8+4*n+2*hh,2)}, v{wa} offset:{off + hh*16*144 + n*32}", tag=("p3", s & 7))
    def mf(s):
        b = F3 + (s & 1) * 28
        for n in range(5):
            for tt in range(2):
                acc = V(A3 + (n*2+tt)*4, 4)
                o(f"v_mfma_f32_16x16x32_bf16 {acc}, {V(b+8+4*n,4)}, {V(b+4*tt,4)}, {acc}")
    for s in range(45):
        o.barrier()
        if s == 0: stamp(o, cfg, 6)
        if s > 0: o.wait_lg(("p3", (s-1) & 7))
        reads(s)
        if s > 0: mf(s-1)
    o("s_waitcnt lgkmcnt(0)")
    mf(44)
    stamp(o, cfg, 7)
    o.barrier()
    o("v_lshlrev_b32 v4, 4, v1")
    o(f"s_mul_i32 s66, s{sWI}, 5120"); o(f"s_xor_b32 s67, s{sWI}, 1"); o("s_mul_i32 s67, s67, 5120")
    o("v_add_u32 v5, s66, v4"); o("v_add_u32 v6, s67, v4")
    LK = o.newlabel("Lkh1"); LJ = o.newlabel("Lkhj")
    sv = (list(o.vm), list(o.lg), o.nbar)
    for kh in range(2):
        o.vm, o.lg, o.nbar = list(sv[0]), list(sv[1]), sv[2]
        if kh == 0:
            o("s_cmp_lg_u32 s64, 0"); o(f"s_cbranch_scc1 {LK}")
        else:
            o.label(LK)
            o("s_nop 7")
        for n in range(5):
            o(f"ds_write_b128 v5, {V(A3 + (n*2+1-kh)*4, 4)} offset:{n*1024}")
        o("s_waitcnt lgkmcnt(0)")
        o.barrier()
        for n in range(5):
            o(f"ds_read_b128 {V(A3 + (n*2+1-kh)*4, 4)}, v6 offset:{n*1024}", tag=("ex3", n))
        o.wait_vm("xres")
        for n in range(5):
            o.wait_lg(("ex3", n))
            k = A3 + (n*2+kh)*4; r = A3 + (n*2+1-kh)*4
            for i in range(4): o(f"v_add_f32 v{k+i}, v{k+i}, v{r+i}")
            o(f"v_lshlrev_b32 v{r}, 16, v{XO+2*n}"); o(f"v_and_b32 v{r+1}, s{sMSK}, v{XO+2*n}")
            o(f"v_lshlrev_b32 v{r+2}, 16, v{XO+2*n+1}"); o(f"v_and_b32 v{r+3}, s{sMSK}, v{XO+2*n+1}")
            for i in range(4): o(f"v_add_f32 v{k+i}, v{k+i}, v{r+i}")
            o(f"v_cvt_pk_bf16_f32 v{k}, v{k}, v{k+1}"); o(f"v_cvt_pk_bf16_f32 v{k+1}, v{k+2}, v{k+3}")
            if n == 4: o("s_mov_b32 exec_hi, 0")
            o(f"buffer_store_dwordx2 {V(k,2)}, v10, s[{rOUT}:{rOUT+3}], 0 offen offset:{n*32}")
        o("s_mov_b64 exec, -1")
        if kh == 0: o(f"s_branch {LJ}")
    o.label(LJ)
    stamp(o, cfg, 8)

VZ = 16; VQ = 21; VS = 26; VZ2 = 30
ZP = 40; TM = 76; YF = 112; ST = 184; PH = 160; ET = 200
sF5, sO5 = 96, 97

def divmod_small(o, vq, vr, vx, d, maxv, t):
    sh = 16
    m = (1 << sh) // d + 1
    for x in range(maxv + 1): assert (x * m) >> sh == x // d
    assert m * maxv < (1 << 32) and m < (1 << 24)
    o(f"v_mul_u32_u24 v{vq}, {m}, v{vx}")
    o(f"v_lshrrev_b32 v{vq}, {sh}, v{vq}")
    o(f"v_mul_u32_u24 v{t}, {d}, v{vq}")
    o(f"v_sub_u32 v{vr}, v{vx}, v{t}")

def m0_fifth(o, dest):
    o(f"s_mul_i32 s67, s{sF5}, {dest}"); o(f"s_add_u32 m0, s67, s{sO5}")

def p1_dma(o, slot):
    b = slot // 9; sl = slot % 9
    if sl == 0:
        if b == 1:
            o(f"s_mul_i32 s64, s{sCG}, 72"); o(f"s_sub_u32 s65, {576*3456}, s64"); srd(o, rW, sWQKV, 64, "s65")
        else:
            o(f"s_mul_i32 s64, s{sCG}, 288")
            if b == 0: o("s_add_u32 s64, s64, 4608")
            o(f"s_sub_u32 s65, {576*9216}, s64"); srd(o, rW, sWIN, 64, "s65")
    rowb = 3456 if b == 1 else 9216
    vb = VQ if b == 1 else VZ
    base = (slot % P1_R) * P1_SLOT
    o(f"s_mov_b32 s66, {sl*64*rowb}")
    for q in range(5):
        if q < 4: o(f"s_add_u32 m0, s72, {base + q*4096}")
        else: m0_fifth(o, base + 16384)
        o(f"buffer_load_dwordx4 v{vb+q}, s[{rW}:{rW+3}], s66 offen lds", tag=("w", slot))

def gelu8(o, xs, ys, t):
    n = len(xs)
    for i in range(n): o(f"v_mul_f32 v{t+i}, v{xs[i]}, v{xs[i]}")
    for i in range(n): o(f"v_fma_f32 v{t+i}, v{t+i}, s{sC2}, v39")
    for i in range(n): o(f"v_mul_f32 v{t+i}, v{t+i}, v{xs[i]}")
    for i in range(n): o(f"v_exp_f32 v{t+i}, v{t+i}")
    for i in range(n): o(f"v_add_f32 v{t+i}, 1.0, v{t+i}")
    for i in range(n): o(f"v_rcp_f32 v{t+i}, v{t+i}")
    for i in range(n): o(f"v_mul_f32 v{ys[i]}, v{xs[i]}, v{t+i}")

def unpack4(o, p, x):
    for k in range(4):
        o(f"v_lshlrev_b32 v{x+2*k}, 16, v{p+k}"); o(f"v_and_b32 v{x+2*k+1}, s{sMSK}, v{p+k}")

def poll_cnt(o, kind, idx_s):
    o(f"s_lshl_b32 s65, s{idx_s}, 12"); o(f"s_add_u32 s65, s65, {WS_CNT + kind*16*4096}")
    o("v_mov_b32 v6, 0")
    poll(o, 6, 7, 1, 64, rWS, "s65")

def roleB(o, cfg):
    o(f"s_lshl_b32 s72, s{sWI}, 10")
    o(f"s_cmp_lt_u32 s{sWI}, 2"); o(f"s_cselect_b32 s{sF5}, 1, 0"); o(f"s_cselect_b32 s{sO5}, s72, {L_OOB}")
    for q in range(5):
        o(f"s_lshl_b32 s64, s{sWI}, 6"); o(f"s_add_u32 s64, s64, {q*256}")
        o("v_add_u32 v6, s64, v1")
        divmod_small(o, 7, 8, 6, 18, 1279, 9)
        o("v_and_b32 v9, 32, v7")
        o("v_bfe_u32 v10, v7, 2, 2"); o("v_lshl_add_u32 v9, v10, 3, v9")
        o("v_bfe_u32 v10, v7, 4, 1"); o("v_lshl_add_u32 v9, v10, 2, v9")
        o("v_and_b32 v10, 3, v7"); o("v_add_u32 v9, v9, v10")
        o("v_mul_u32_u24 v10, 9216, v9"); o(f"v_lshl_add_u32 v{VZ+q}, v8, 4, v10")
        divmod_small(o, 10, 11, 8, 3, 17, 12)
        o("v_lshrrev_b32 v12, 1, v10"); o("v_mul_u32_u24 v13, 1152, v12")
        o("v_cmp_eq_u32 vcc, 1, v12"); o("v_subrev_u32 v12, 8, v13"); o("v_cndmask_b32 v13, v13, v12, vcc")
        o("v_and_b32 v10, 1, v10"); o("v_mul_u32_u24 v10, 36, v10"); o("v_add_u32 v13, v13, v10")
        o("v_lshl_add_u32 v13, v11, 4, v13")
        o("v_mul_u32_u24 v10, 3456, v9"); o(f"v_add_u32 v{VQ+q}, v13, v10")
    o(f"s_cmp_lt_u32 s{sWI}, 2"); o("s_cselect_b32 s64, 0, 0x7ff00000")
    o(f"v_add_u32 v{VZ+4}, s64, v{VZ+4}"); o(f"v_add_u32 v{VQ+4}, s64, v{VQ+4}")
    for sl in range(4): p1_dma(o, sl)
    LI = o.newlabel("Linit")
    o(f"s_cmp_lg_u32 s{sRB}, 0"); o(f"s_cbranch_scc1 {LI}")
    o(f"s_cmp_lg_u32 s{sWI}, 3"); o(f"s_cbranch_scc1 {LI}")
    sv = list(o.vm)
    for k in range(4): o(f"v_mov_b32 v{8+k}, 0")
    o("v_lshlrev_b32 v6, 4, v1")
    o(f"s_mul_i32 s64, s{sCG}, 6144"); o(f"s_add_u32 s64, s64, {WS_KV}")
    for k in range(6):
        o(f"buffer_store_dwordx4 v[8:11], v6, s[{rWS}:{rWS+3}], s64 offen sc1")
        o("s_add_u32 s64, s64, 1024")
    o("v_lshlrev_b32 v7, 16, v1")
    o(f"s_lshl_b32 s64, s{sCG}, 12"); o(f"s_add_u32 s64, s64, {WS_CNT}")
    o("s_mov_b64 exec, 31")
    o(f"buffer_store_dword v8, v7, s[{rWS}:{rWS+3}], s64 offen sc1")
    o("s_waitcnt vmcnt(0)")
    srd(o, rM, sDBG, None, 256)
    o("s_mov_b64 exec, 1")
    o("v_mov_b32 v9, 1"); o(f"s_lshl_b32 s64, s{sCG}, 2")
    o(f"buffer_store_dword v9, v8, s[{rM}:{rM+3}], s64 offen sc1")
    o("s_waitcnt vmcnt(0)")
    o("s_mov_b64 exec, -1")
    o.label(LI)
    o.vm = sv
    o(f"s_mul_i32 s64, s{sCG}, 1296"); o(f"s_sub_u32 s65, 20736, s64")
    srd(o, rM, sWPHI, 64, "s65")
    for k in range(2):
        o(f"s_lshl_b32 s64, s{sWI}, 6"); o(f"s_add_u32 s64, s64, {k*256}")
        o(f"v_add_u32 v6, s64, v1")
        o(f"v_lshlrev_b32 v7, 2, v6")
        o(f"buffer_load_dword v{122+k}, v7, s[{rM}:{rM+3}], 0 offen", tag="wphi")
        divmod_small(o, 7, 8, 6, 9, 511, 9)
        o("v_cmp_lt_u32 vcc, 17, v7"); o("v_add_u32 v9, 6, v7"); o("v_cndmask_b32 v7, v7, v9, vcc")
        o("v_mul_u32_u24 v7, 40, v7"); o("v_lshl_add_u32 v7, v8, 2, v7")
        o(f"v_add_u32 v7, {L_IMG}, v7")
        o(f"v_mov_b32 v9, {L_OOB}")
        o("v_cmp_gt_u32 vcc, 324, v6"); o(f"v_cndmask_b32 v{120+k}, v9, v7, vcc")
    for k in range(4): o(f"v_mov_b32 v{8+k}, 0")
    o("v_lshlrev_b32 v32, 4, v1")
    o(f"s_add_u32 s64, s72, {L_IMG}"); o("v_add_u32 v6, s64, v32")
    o("ds_write_b128 v6, v[8:11]")
    layernorm_x(o)
    ln_write(o, 0)
    o.barrier()
    o.wait_vm("wphi")
    for k in range(2): o(f"ds_write_b32 v{120+k}, v{122+k}")
    o.barrier()
    ln_write(o, 1)
    o.barrier()
    o(f"v_mov_b32 v39, {f2u(C1):#x}")
    o(f"s_mul_i32 s64, s{sWI}, 9216"); o(f"s_add_u32 s64, s64, {L_HO}"); o("v_add_u32 v33, s64, v32")
    o("v_and_b32 v2, 15, v1"); o("v_lshrrev_b32 v3, 4, v1")
    stamp(o, cfg, 1)

    def t1_read():
        for f in range(9): o(f"ds_read_b128 {V(ZP+4*f,4)}, v33 offset:{f*1024}", tag=("zp", f))
        for i in range(16): o(f"v_mov_b32 v{ST+i}, 0")
    def t1(f):
        def go():
            o.wait_lg(("zp", f))
            unpack4(o, ZP+4*f, TM)
            ys = [YF + 8*f + j for j in range(8)]
            gelu8(o, [TM+j for j in range(8)], ys, TM+8)
            for j in range(8):
                o(f"v_add_f32 v{ST+2*j}, v{ST+2*j}, v{ys[j]}"); o(f"v_fmac_f32 v{ST+2*j+1}, v{ys[j]}, v{ys[j]}")
        return go
    def t2():
        for r in (8, 4, 2, 1):
            for i in range(16): o(f"v_add_f32_dpp v{ST+i}, v{ST+i}, v{ST+i} row_ror:{r} row_mask:0xf bank_mask:0xf")
        o(f"s_lshl_b32 s64, s{sRB}, 4"); o(f"s_add_u32 s64, s64, s{sCG}"); o("s_lshl_b32 s64, s64, 10")
        o(f"s_lshl_b32 s65, s{sWI}, 8"); o("s_add_u32 s64, s64, s65"); o(f"s_add_u32 s64, s64, {WS_ST}")
        o("v_lshlrev_b32 v6, 6, v3")
        o("s_mov_b32 exec_lo, 0x00010001"); o("s_mov_b32 exec_hi, 0x00010001")
        for k in range(4):
            o(f"buffer_store_dwordx4 {V(ST+4*k,4)}, v6, s[{rWS}:{rWS+3}], s64 offen offset:{16*k} sc1", tag="st")
        o("s_mov_b64 exec, -1")
        srd(o, rM, sDBG, None, 256)
        o("v_lshlrev_b32 v8, 2, v1")
        poll(o, 8, 7, 16, 1, rM)
        signal(o, CNT_ST, sRB, 6, 7)
        stamp(o, cfg, 9)
    def t5a():
        poll_cnt(o, CNT_ST, sRB)
        stamp(o, cfg, 10)
        o(f"s_lshl_b32 s64, s{sRB}, 14"); o(f"s_lshl_b32 s65, s{sWI}, 8"); o("s_add_u32 s64, s64, s65"); o(f"s_add_u32 s64, s64, {WS_ST}")
        o("v_lshlrev_b32 v6, 10, v3"); o("v_lshl_add_u32 v6, v2, 4, v6")
        for k in range(4):
            o(f"buffer_load_dwordx4 {V(TM+4*k,4)}, v6, s[{rWS}:{rWS+3}], s64 offen sc1", tag="stl")
            if k < 3: o("s_add_u32 s64, s64, 4096")
        o.wait_vm("stl")
        for i in range(4):
            o(f"v_add_f32 v{TM+i}, v{TM+i}, v{TM+4+i}"); o(f"v_add_f32 v{TM+8+i}, v{TM+8+i}, v{TM+12+i}")
        for i in range(4): o(f"v_add_f32 v{TM+i}, v{TM+i}, v{TM+8+i}")
        for sw in ("v_permlane16_swap_b32", "v_permlane32_swap_b32"):
            for i in range(4): o(f"v_mov_b32 v{TM+4+i}, v{TM+i}")
            for i in range(4): o(f"{sw} v{TM+i}, v{TM+4+i}")
            for i in range(4): o(f"v_add_f32 v{TM+i}, v{TM+i}, v{TM+4+i}")
        inv = f2u(1.0 / 2304.0)
        for i in range(4): o(f"v_mul_f32 v{TM+i}, {inv:#x}, v{TM+i}")
        for i in (0, 2):
            o(f"v_fma_f32 v{TM+i+1}, -v{TM+i}, v{TM+i}, v{TM+i+1}")
            o(f"v_max_f32 v{TM+i+1}, 0, v{TM+i+1}")
            o(f"v_add_f32 v{TM+i+1}, {f2u(1e-5):#x}, v{TM+i+1}")
            o(f"v_rsq_f32 v{TM+4+i}, v{TM+i+1}")
            o(f"v_mul_f32 v{TM+5+i}, v{TM+i}, v{TM+4+i}")
            o(f"v_sub_f32 v{TM+5+i}, 0, v{TM+5+i}")
        o(f"s_lshl_b32 s64, s{sWI}, 8"); o(f"s_add_u32 s64, s64, {L_SCR}")
        o("v_lshlrev_b32 v6, 4, v2"); o("v_add_u32 v6, s64, v6")
        o("v_lshlrev_b32 v7, 6, v3"); o("v_add_u32 v7, s64, v7")
        o(f"ds_write_b128 v6, {V(TM+4,4)}")
        o("s_waitcnt lgkmcnt(0)")
        for k in range(4): o(f"ds_read_b128 {V(ST+4*k,4)}, v7 offset:{16*k}", tag="rs")
        o(f"s_lshl_b32 s73, s{sCG}, 6"); o(f"s_lshl_b32 s64, s{sRB}, 2"); o("s_add_u32 s73, s73, s64"); o(f"s_add_u32 s73, s73, s{sWI}")
        o("s_mul_i32 s73, s73, 9216")
        o.wait_lg("rs")
    def t5b(fs):
        def go():
            for f in fs:
                y = YF + 8*f
                for j in range(8): o(f"v_fma_f32 v{y+j}, v{y+j}, v{ST+2*j}, v{ST+2*j+1}")
                for k in range(4): o(f"v_cvt_pk_bf16_f32 v{y+k}, v{y+2*k}, v{y+2*k+1}")
                if f % 4 == 0 and f > 0: o("s_add_u32 s73, s73, 4096")
                o(f"buffer_store_dwordx4 {V(y,4)}, v32, s[{rWS}:{rWS+3}], s73 offen offset:{(f%4)*1024} sc1", tag="z2")
        return go
    def t5c():
        o("s_waitcnt vmcnt(0)")
        signal(o, CNT_Z2, sCG, 6, 7)
        stamp(o, cfg, 11)
    QF = 40; WB = 64; PQ = 112
    def t4a():
        o(f"s_mul_i32 s64, s{sWI}, 5120"); o(f"s_add_u32 s64, s64, {L_HO}")
        o("v_add_u32 v6, s64, v32"); o("v_lshlrev_b32 v7, 3, v1"); o("v_add_u32 v7, s64, v7")
        for h in range(2):
            for p in range(2): o(f"ds_read_b128 {V(QF+12*h+4*p,4)}, v6 offset:{h*2560+p*1024}", tag="qf")
            o(f"ds_read_b64 {V(QF+12*h+8,2)}, v7 offset:{h*2560+2048}", tag="qf")
            o(f"v_mov_b32 v{QF+12*h+10}, 0"); o(f"v_mov_b32 v{QF+12*h+11}, 0")
        o("v_and_b32 v6, 3, v2"); o("v_and_b32 v7, 1, v3"); o("v_mov_b32 v8, 2")
        o("v_cmp_eq_u32 vcc, v6, v3"); o("v_cndmask_b32 v7, v8, v7, vcc")
        o("v_mul_u32_u24 v7, 960, v7"); o("v_lshrrev_b32 v6, 2, v2"); o("v_mul_u32_u24 v6, 40, v6")
        o("v_add_u32 v6, v6, v7"); o(f"v_add_u32 v6, {L_IMG}, v6")
        seq = [(p, m) for p in range(3) for m in range(5)]
        def rd(e):
            p, m = seq[e]
            for hh in range(2):
                o(f"ds_read_b64_tr_b16 {V(WB+4*(e%4)+2*hh,2)}, v6 offset:{(8*p+4*hh)*40 + 8*m}", tag=("wb", e))
        for e in range(3): rd(e)
        for e, (p, m) in enumerate(seq):
            if e + 3 < 15: rd(e+3)
            o.wait_lg(("wb", e))
            for h in range(2):
                d = V(PQ+20*h+4*m, 4)
                o(f"v_mfma_f32_16x16x32_bf16 {d}, {V(WB+4*(e%4),4)}, {V(QF+12*h+4*p,4)}, {'0' if p == 0 else d}")
    def t4b(h, part):
        def go():
            P = PQ + 20*h
            if part == 0:
                for (op3, op2, d) in (("v_max3_f32", "v_max_f32", TM), ("v_min3_f32", "v_min_f32", TM+1)):
                    o(f"{op3} v{d}, v{P}, v{P+1}, v{P+2}")
                    o(f"{op3} v{d+2}, v{P+3}, v{P+4}, v{P+5}")
                    for k in range(6, 18, 4):
                        o(f"{op3} v{d}, v{d}, v{P+k}, v{P+k+1}")
                        o(f"{op3} v{d+2}, v{d+2}, v{P+k+2}, v{P+k+3}")
                    o(f"{op2} v{d}, v{d}, v{d+2}")
                o(f"v_mul_f32 v{TM}, s{sLOG}, v{TM}"); o(f"v_mul_f32 v{TM+1}, s{sLOG}, v{TM+1}")
                for i in range(18): o(f"v_fma_f32 v{ET+i}, v{P+i}, s{sLOG}, -v{TM}")
                for i in range(18): o(f"v_exp_f32 v{ET+i}, v{ET+i}")
            elif part == 1:
                for i in range(18): o(f"v_fma_f32 v{ET+18+i}, -v{P+i}, s{sLOG}, v{TM+1}")
                for i in range(18): o(f"v_exp_f32 v{ET+18+i}, v{ET+18+i}")
            else:
                for sgn in range(2):
                    e = ET + 18*sgn; d = TM + 2 + 2*sgn
                    o(f"v_add_f32 v{d}, v{e}, v{e+1}"); o(f"v_add_f32 v{d+1}, v{e+2}, v{e+3}")
                    for k in range(4, 18, 2):
                        o(f"v_add_f32 v{d}, v{d}, v{e+k}"); o(f"v_add_f32 v{d+1}, v{d+1}, v{e+k+1}")
                    o(f"v_add_f32 v{d}, v{d}, v{d+1}")
                o(f"v_rcp_f32 v{TM+2}, v{TM+2}"); o(f"v_rcp_f32 v{TM+4}, v{TM+4}")
                for i in range(36): o(f"v_mul_f32 v{ET+i}, v{ET+i}, v{TM + 2 + 2*(i//18)}")
                for k in range(18): o(f"v_cvt_pk_bf16_f32 v{PH+20*h+k}, v{ET+2*k}, v{ET+2*k+1}")
                o(f"v_mov_b32 v{PH+20*h+18}, 0"); o(f"v_mov_b32 v{PH+20*h+19}, 0")
                o(f"s_lshl_b32 s64, s{sWI}, 5"); o(f"s_add_u32 s64, s64, {16*h}")
                o("v_add_u32 v6, s64, v2"); o("v_mul_u32_u24 v6, 96, v6")
                o("v_and_b32 v7, 1, v3"); o("v_mul_u32_u24 v7, 12288, v7"); o("v_add_u32 v6, v6, v7"); o(f"v_add_u32 v6, {L_PI}, v6")
                o("s_mov_b32 exec_lo, 0")
                for k in range(4): o(f"ds_write_b128 v6, {V(PH+20*h+4*k,4)} offset:{16*k}")
                o(f"ds_write_b64 v6, {V(PH+20*h+16,2)} offset:64")
                o("s_mov_b64 exec, -1")
                if h == 1: o("s_waitcnt lgkmcnt(0)")
        return go
    def t6():
        KB = 76; KA = 92; KD = 140
        o("v_lshrrev_b32 v6, 2, v2"); o("v_lshl_add_u32 v6, v3, 2, v6"); o("v_mul_u32_u24 v6, 96, v6")
        o("v_and_b32 v7, 3, v2"); o("v_lshl_add_u32 v6, v7, 3, v6")
        o(f"s_lshr_b32 s64, s{sWI}, 1"); o(f"s_and_b32 s65, s{sWI}, 1")
        o("s_mul_i32 s66, s64, 12288"); o(f"s_add_u32 s66, s66, {L_PI}"); o("v_add_u32 v7, s66, v6")
        o("s_mul_i32 s66, s64, 48"); o("s_lshl_b32 s67, s65, 5"); o("s_add_u32 s66, s66, s67"); o(f"s_add_u32 s66, s66, {L_VI}")
        o("v_add_u32 v6, s66, v6")
        for ka in range(4):
            for hh in range(2):
                o(f"ds_read_b64_tr_b16 {V(KB+4*ka+2*hh,2)}, v6 offset:{(32*ka+16*hh)*96}", tag=("kb", ka))
            for mu in range(3):
                for hh in range(2):
                    o(f"ds_read_b64_tr_b16 {V(KA+4*(ka*3+mu)+2*hh,2)}, v7 offset:{(32*ka+16*hh)*96 + 32*mu}", tag=("ka", ka, mu))
            if ka >= 1:
                for mu in range(3):
                    o.wait_lg(("ka", ka-1, mu))
                    d = V(KD+4*mu, 4)
                    o(f"v_mfma_f32_16x16x32_bf16 {d}, {V(KA+4*((ka-1)*3+mu),4)}, {V(KB+4*(ka-1),4)}, {'0' if ka == 1 else d}")
        for mu in range(3):
            o.wait_lg(("ka", 3, mu))
            d = V(KD+4*mu, 4)
            o(f"v_mfma_f32_16x16x32_bf16 {d}, {V(KA+4*(9+mu),4)}, {V(KB+12,4)}, {d}")
        o("v_mul_u32_u24 v6, 320, v3"); o("v_lshl_add_u32 v6, v2, 2, v6")
        o(f"s_mul_i32 s66, s{sCG}, 6144"); o("s_mul_i32 s67, s64, 2880"); o("s_add_u32 s66, s66, s67")
        o("s_lshl_b32 s67, s65, 6"); o("s_add_u32 s66, s66, s67"); o(f"s_add_u32 s66, s66, {WS_KV}")
        o("s_cmp_eq_u32 s65, 0"); o("s_cselect_b32 s67, -1, 0x00070007")
        o("s_mov_b32 exec_lo, s67"); o("s_mov_b32 exec_hi, s67")
        for mu in range(3):
            if mu == 2: o("s_and_b32 exec_lo, s67, 0xffff"); o("s_mov_b32 exec_hi, 0")
            for i in range(4):
                o(f"buffer_atomic_add_f32 v{KD+4*mu+i}, v6, s[{rWS}:{rWS+3}], s66 offen offset:{(16*mu+i)*80} sc1", tag="kv")
        o("s_mov_b64 exec, -1")
    def t6b():
        o("s_waitcnt vmcnt(0)")
        signal(o, CNT_KV, sCG, 6, 7)

    sched = {10: [t1_read, t1(0)], 11: [t1(1), t1(2)], 12: [t1(3)], 13: [t1(4), t1(5)], 14: [t1(6)], 15: [t1(7), t1(8)],
             16: [t2], 19: [t5a], 20: [t5b(range(9))], 21: [t4a], 22: [t5c, t4b(0,0), t4b(0,1)], 23: [t4b(0,2), t4b(1,0)],
             24: [t4b(1,1), t4b(1,2)], 25: [t6], 26: [t6b]}
    for t in range(27):
        o.wait_vm(("w", t))
        o.barrier()
        if t >= 1 and t + 3 <= 26: p1_dma(o, t + 3)
        for fn in sched.get(t, []): fn()
    stamp(o, cfg, 2)
    o("s_waitcnt lgkmcnt(0)")
    o.barrier()
    for f in range(9): o(f"ds_read_b128 {V(ZP+4*f,4)}, v33 offset:{f*1024}")
    o("s_waitcnt lgkmcnt(0)")
    if cfg.stop <= 1:
        o("s_waitcnt vmcnt(0)")
        return
    roleB_p2(o, cfg)
    if cfg.stop <= 2: return
    roleB_p3(o, cfg)

def p2_dma(o, s):
    base = (s % 4) * P2_SLOT
    o(f"s_add_u32 m0, s74, {base}")
    o(f"s_mov_b32 s66, {s*128}")
    for q in range(4):
        o(f"buffer_load_dwordx4 v{VS+q}, s[{rWSP}:{rWSP+3}], s66 offen offset:{q*1024} lds", tag=("s2", s))
    o(f"s_add_u32 m0, s74, {base + 16384}")
    o(f"s_add_u32 s66, s75, {s*18432}")
    for q in range(4):
        o(f"buffer_load_dwordx4 v{VZ2}, s[{rWS}:{rWS+3}], s66 offen offset:{q*1024} sc1 lds", tag=("s2", s))
    m0_fifth(o, base + 32768)
    o(f"buffer_load_dwordx4 v{VZ2+1}, s[{rWS}:{rWS+3}], s66 offen sc1 lds", tag=("s2", s))

def roleB_p2(o, cfg):
    o(f"s_lshl_b32 s74, s{sWI}, 12")
    o(f"s_mul_i32 s75, s{sCG}, 589824")
    o(f"s_lshl_b32 s64, s{sRB}, 19"); srd(o, rWSP, sWSP, 64, 524288)
    o("v_lshrrev_b32 v6, 3, v1"); o("v_and_b32 v7, 7, v1"); o("v_xor_b32 v7, v7, v6"); o("v_lshlrev_b32 v7, 4, v7")
    o("v_and_b32 v8, 3, v6"); o("v_lshrrev_b32 v6, 5, v1"); o("v_lshl_add_u32 v8, v6, 3, v8")
    o(f"s_lshl_b32 s64, s{sWI}, 5"); o("v_add_u32 v8, s64, v8"); o("v_lshl_add_u32 v7, v8, 12, v7")
    for q in range(4):
        c = (16*(q & 1) + 4*(q >> 1)) * 4096 - q*1024
        o(f"v_add_u32 v{VS+q}, {c}, v7")
    o(f"v_add_u32 v{VZ2}, s74, v32")
    o(f"s_cmp_lt_u32 s{sWI}, 2"); o("s_mov_b32 s65, 16384"); o("s_cselect_b32 s64, s65, 0x7ff00000"); o("s_add_u32 s64, s64, s72")
    o(f"v_add_u32 v{VZ2+1}, s64, v32")
    o.barrier()
    poll_cnt(o, CNT_Z2, sCG)
    stamp(o, cfg, 3)
    for s in range(3): p2_dma(o, s)
    def t8(f):
        def go():
            unpack4(o, ZP+4*f, TM)
            gelu8(o, [TM+j for j in range(8)], [TM+j for j in range(8)], TM+8)
            for k in range(4): o(f"v_cvt_pk_bf16_f32 v{ZP+4*f+k}, v{TM+2*k}, v{TM+2*k+1}")
        return go
    def t9zero():
        for k in range(4): o(f"v_mov_b32 v{8+k}, 0")
        o(f"s_add_u32 s64, s72, {L_IMG}"); o("v_add_u32 v6, s64, v32")
        o("ds_write_b128 v6, v[8:11]")
        o(f"v_min_u32 v6, {L_IMG + 5760 - 16 - 4096}, v6")
        o("ds_write_b128 v6, v[8:11] offset:4096")
        o("s_waitcnt lgkmcnt(0)")
    def t9a():
        KR = 112
        poll_cnt(o, CNT_KV, sCG)
        LS = o.newlabel("Lkvs")
        o(f"s_cmp_ge_u32 s{sWI}, 2"); o(f"s_cbranch_scc1 {LS}")
        o(f"s_mul_i32 s64, s{sCG}, 6144"); o(f"s_mul_i32 s65, s{sWI}, 2880"); o("s_add_u32 s64, s64, s65"); o(f"s_add_u32 s64, s64, {WS_KV}")
        o("v_mul_u32_u24 v6, 80, v1")
        o("s_mov_b32 exec_hi, 15")
        for k in range(5): o(f"buffer_load_dwordx4 {V(KR+4*k,4)}, v6, s[{rWS}:{rWS+3}], s64 offen offset:{16*k} sc1")
        o(f"s_mul_i32 s65, s{sWI}, 1920"); o(f"s_add_u32 s65, s65, {L_IMG}")
        o("v_mul_u32_u24 v7, 48, v1"); o("v_add_u32 v7, s65, v7")
        o("s_waitcnt vmcnt(0)")
        for b in range(2):
            for k in range(4): o(f"v_cvt_pk_bf16_f32 v{TM+6*b+k}, v{KR+9*b+2*k}, v{KR+9*b+2*k+1}")
            o(f"v_cvt_pk_bf16_f32 v{TM+6*b+4}, v{KR+9*b+8}, v{KR+18}")
            o(f"v_mov_b32 v{TM+6*b+5}, 0")
        for k in range(3): o(f"ds_write_b128 v7, {V(TM+4*k,4)} offset:{16*k}")
        o("s_waitcnt lgkmcnt(0)")
        o("s_mov_b64 exec, -1")
        o.label(LS)
    def t9b():
        OB = 76; OD = 112
        o("v_bfe_u32 v6, v2, 1, 1"); o("v_mov_b32 v8, 2")
        o("v_cmp_eq_u32 vcc, v6, v3"); o("v_cndmask_b32 v7, v8, v3, vcc")
        o("v_mul_u32_u24 v7, 1920, v7"); o("v_lshrrev_b32 v6, 2, v2"); o("v_mul_u32_u24 v6, 48, v6"); o("v_add_u32 v7, v7, v6")
        o("v_and_b32 v6, 1, v2"); o("v_mul_u32_u24 v6, 24, v6"); o("v_add_u32 v6, v6, v7"); o(f"v_add_u32 v6, {L_IMG}, v6")
        seq = [(p, mu) for p in range(5) for mu in range(3)]
        def rd(e):
            p, mu = seq[e]
            for hh in range(2):
                o(f"ds_read_b64_tr_b16 {V(OB+4*(e%4)+2*hh,2)}, v6 offset:{(8*p+4*hh)*48 + 8*mu}", tag=("ob", e))
        for e in range(3): rd(e)
        for e, (p, mu) in enumerate(seq):
            if e + 3 < 15: rd(e+3)
            o.wait_lg(("ob", e))
            for h in range(2):
                d = V(OD+12*h+4*mu, 4)
                o(f"v_mfma_f32_16x16x32_bf16 {d}, {V(OB+4*(e%4),4)}, {V(PH+20*h+4*p,4)}, {'0' if p == 0 else d}")
        o(f"s_lshl_b32 s64, s{sRB}, 1"); o(f"s_lshr_b32 s65, s{sWI}, 1"); o("s_add_u32 s64, s64, s65"); o(f"s_mul_i32 s64, s64, {90*4096}")
        o(f"s_and_b32 s65, s{sWI}, 1"); o("s_lshl_b32 s65, s65, 11"); o("s_add_u32 s64, s64, s65"); o(f"s_add_u32 s64, s64, {WS_Y}")
        o(f"s_lshl_b32 s65, s{sCG}, 12"); o("s_add_u32 s65, s65, s64")
        o(f"s_lshr_b32 s66, s{sCG}, 3"); o("s_lshl_b32 s66, s66, 12"); o("s_add_u32 s64, s64, s66"); o(f"s_add_u32 s64, s64, {16*4096}")
        o(f"s_and_b32 s66, s{sCG}, 7"); o("s_lshl_b32 s66, s66, 1"); o("s_add_u32 s64, s64, s66")
        for h in range(2):
            d = OD + 12*h
            o(f"v_add_f32 v{d+9}, {f2u(1e-6):#x}, v{d+9}")
            o(f"v_rcp_f32 v{d+9}, v{d+9}")
            for e in range(9): o(f"v_mul_f32 v{d+e}, v{d+e}, v{d+9}")
            for k in range(4): o(f"v_cvt_pk_bf16_f32 v{d+k}, v{d+2*k}, v{d+2*k+1}")
            o(f"v_cvt_pk_bf16_f32 v{d+8}, v{d+8}, v{d+8}")
            o(f"buffer_store_dwordx4 {V(d,4)}, v32, s[{rWS}:{rWS+3}], s65 offen offset:{h*1024} sc1", tag="o")
            o(f"buffer_store_short v{d+8}, v32, s[{rWS}:{rWS+3}], s64 offen offset:{h*1024} sc1", tag="o")
    def t9c():
        o("s_waitcnt vmcnt(0)")
        signal(o, CNT_O, sRB, 6, 7)
    def z1out():
        o(f"s_mul_i32 s64, s{sWI}, 9216"); o(f"s_add_u32 s64, s64, {L_Z1}"); o("v_add_u32 v6, s64, v32")
        for f in range(9): o(f"ds_write_b128 v6, {V(ZP+4*f,4)} offset:{f*1024}")
        o("s_waitcnt lgkmcnt(0)")
    sched = {1: [t9zero], 14: [t9a], 16: [t9b], 19: [t9c], 31: [z1out]}
    for f in range(9): sched.setdefault(2 + f, []).append(t8(f))
    o.wait_vm(("s2", 0))
    o.barrier()
    for s in range(32):
        o.wait_vm(("s2", s + 1))
        o.barrier()
        if s + 3 <= 31: p2_dma(o, s + 3)
        for fn in sched.get(s, []): fn()
    stamp(o, cfg, 4)
    o.barrier()
    if cfg.stop <= 2: o.barrier()

def roleB_p3(o, cfg):
    VW = 16; VY = 19
    def wsec(kind):
        for k in range(3):
            if k < 2:
                o(f"s_lshl_b32 s64, s{sWI}, 7"); o(f"s_add_u32 s64, s64, {k*64}"); o("v_add_u32 v6, s64, v1")
            else: o("v_add_u32 v6, 512, v1")
            divmod_small(o, 7, 8, 6, 9, 575, 9)
            o("v_lshrrev_b32 v9, 5, v7")
            if kind in ("o", "ol"):
                o("v_bfe_u32 v10, v7, 4, 1"); o("v_and_b32 v11, 3, v7"); o("v_lshl_add_u32 v10, v10, 2, v11")
                o("v_bfe_u32 v11, v7, 2, 2"); o("v_mul_u32_u24 v11, 9, v11")
                if kind == "o":
                    o("v_mul_u32_u24 v9, 36, v9"); o("v_add3_u32 v7, v9, v10, v11")
                else:
                    o("v_lshl_add_u32 v9, v9, 3, v10"); o("v_mul_u32_u24 v9, 36, v9"); o("v_add3_u32 v7, v9, v11, 8")
            elif kind == "yl":
                o("v_mul_u32_u24 v9, 288, v9"); o("v_bfe_u32 v10, v7, 4, 1"); o("v_mul_u32_u24 v10, 144, v10")
                o("v_and_b32 v11, 15, v7"); o("v_add3_u32 v7, v9, v10, v11"); o("v_add_u32 v7, 128, v7")
            o("v_mul_u32_u24 v7, 1152, v7"); o("v_lshl_add_u32 v7, v8, 4, v7")
            if k < 2: o(f"v_subrev_u32 v{VW+k}, {k*1024}, v7")
            else: o(f"v_add_u32 v{VW+k}, s76, v7")
    def dmaW(s):
        if s == 0: o(f"s_sub_u32 s65, {576*1152}, s77"); srd(o, rWO, sWO, 77, "s65"); wsec("o")
        if s == 8: wsec("ol")
        if s == 9: o(f"s_sub_u32 s65, {2304*1152}, s77"); srd(o, rWO, sWOUT, 77, "s65"); wsec("y")
        if s == 41: wsec("yl")
        if s < 8: so = 72*s*1152
        elif s == 8: so = 0
        elif s < 41: so = (144*((s-9) >> 1) + 64*((s-9) & 1)) * 1152
        else: so = 576*(s-41)*1152
        base = (s % P3_R) * P3_SLOT + 8192
        o(f"s_add_u32 m0, s78, {base}")
        o(f"s_mov_b32 s66, {so}")
        for k in range(2):
            o(f"buffer_load_dwordx4 v{VW+k}, s[{rWO}:{rWO+3}], s66 offen offset:{k*1024} lds", tag=("s3", s))
        m0_fifth(o, base + 8192)
        o(f"buffer_load_dwordx4 v{VW+2}, s[{rWO}:{rWO+3}], s66 offen lds", tag=("s3", s))
    def dmaY(s):
        base = (s % P3_R) * P3_SLOT
        o(f"s_add_u32 m0, s78, {base}")
        o(f"s_add_u32 s66, s79, {s*8192}")
        for k in range(2):
            o(f"buffer_load_dwordx4 v{VY}, s[{rWS}:{rWS+3}], s66 offen offset:{k*1024} sc1 lds", tag=("s3", s))
    o(f"s_lshl_b32 s78, s{sWI}, 11")
    o(f"s_lshr_b32 s77, s{sCG}, 1"); o("s_mul_i32 s77, s77, 144")
    o(f"s_cmp_eq_u32 s{sWI}, 0"); o("s_cselect_b32 s76, 0, 0x7ff00000")
    o(f"s_cselect_b32 s{sF5}, 1, 0"); o(f"s_cselect_b32 s{sO5}, 0, {L_OOB}")
    o(f"s_lshl_b32 s79, s{sRB}, 1"); o(f"s_and_b32 s64, s{sCG}, 1"); o("s_add_u32 s79, s79, s64")
    o(f"s_mul_i32 s79, s79, {90*4096}"); o(f"s_add_u32 s79, s79, {WS_Y}")
    o(f"v_add_u32 v{VY}, s78, v32")
    poll_cnt(o, CNT_O, sRB)
    o.barrier()
    for s in range(7): dmaW(s); dmaY(s)
    for s in range(45):
        o.wait_vm(("s3", s))
        o.barrier()
        n = s + 6
        if s >= 1 and n <= 44:
            dmaW(n)
            if n <= 8 or s > 8: dmaY(n)
        if s == 8:
            poll_cnt(o, CNT_Y, sRB)
            stamp(o, cfg, 6)
            for k in range(9, 15): dmaY(k)
    o.barrier()
    o.barrier()

KD = """.section .rodata,"a"
.p2align 6
.amdhsa_kernel NAME_kernel
  .amdhsa_next_free_vgpr 256
  .amdhsa_next_free_sgpr 102
  .amdhsa_accum_offset 256
  .amdhsa_group_segment_fixed_size 0
  .amdhsa_kernarg_size 96
  .amdhsa_user_sgpr_count 2
  .amdhsa_user_sgpr_kernarg_segment_ptr 1
  .amdhsa_system_sgpr_workgroup_id_x 1
.end_amdhsa_kernel
"""

def build(cfg):
    P = Stream("p"); P.loops = []
    prologue(P, cfg)
    P(f"s_cmp_ge_u32 s{sW}, 4"); P("s_cbranch_scc1 L_roleB")
    A_ = Stream("a"); A_.loops = []; A_.vm = list(P.vm)
    roleA(A_, cfg); A_("s_endpgm")
    B_ = Stream("b"); B_.loops = []; B_.vm = list(P.vm)
    roleB(B_, cfg); B_("s_endpgm")
    assert A_.nbar == B_.nbar, (A_.nbar, B_.nbar)
    for L in A_.loops: check_loop(A_.items, L)
    tp, n1 = finalize(P.items + A_.items)
    tb, n2 = finalize(P.items[-12:] + B_.items)
    tb_lines = tb.split("\n")
    k = max(i for i, l in enumerate(tb_lines) if "L_roleB" in l)
    tb = "\n".join(tb_lines[k+1:])
    body = tp + "L_roleB:\n" + tb + "L_end:\n    s_endpgm\n"
    hdr = open("cdna_kernels/" + NAME + ".s.ref").read().split("\n")
    hdr = [l for l in hdr if l.startswith(";") and "@launch" not in l and "Override" not in l and "grid=ceil" not in l]
    t = "\n".join(hdr) + "\n; @launch grid=(256,1,1) block=(512,1,1) lds=163840\n"
    t += '.amdgcn_target "amdgcn-amd-amdhsa--gfx950"\n.text\n'
    t += f".globl {NAME}_kernel\n.p2align 8\n.type {NAME}_kernel,@function\n{NAME}_kernel:\n"
    t += body + KD.replace("NAME", NAME)
    print("nops inserted:", n1, n2, "barriers:", A_.nbar)
    return t

if __name__ == "__main__":
    cfg = Cfg()
    out = "k.s"
    for a in sys.argv[1:]:
        if a.startswith("stop="): cfg.stop = int(a[5:])
        elif a == "stamps": cfg.stamps = True
        elif a.startswith("out="): out = a[4:]
    open(out, "w").write(build(cfg))
    print("wrote", out)
```
